```python
import torch

def _softmax(x, axis=-1):
    return torch.softmax(x, dim=axis)
def _gelu(x):
    return torch.nn.functional.gelu(x, approximate="tanh")
def _silu(x):
    return torch.nn.functional.silu(x)
def _sigmoid(x):
    return torch.sigmoid(x)
def _layernorm(x, axis=-1, eps=1e-5):
    m = x.mean(dim=axis, keepdim=True)
    v = x.var(dim=axis, keepdim=True, unbiased=False)
    return (x - m) / torch.sqrt(v + eps)
def _scatter_add(tgt, idx, src, axis=0):
    return tgt.clone().index_add_(axis, idx, src)
def _segment_sum(src, seg, n):
    out = torch.zeros((n,) + src.shape[1:], dtype=src.dtype)
    return out.index_add_(0, seg, src)
def _pad(x, pw):
    flat = tuple(v for pair in reversed(pw) for v in pair)
    return torch.nn.functional.pad(x, flat)

kernel_name = 'gated_mix__linear_kernel_hedgehog__dense_activation_silu__prompt'

def setup_inputs():

    _w = (lambda a: (lambda t: t.to(torch.bfloat16) if t.is_floating_point() else t)(torch.as_tensor(a)))
    def _A_setup():
        B, S, D, H = 1, 2048, 448, 16
        Dh = D // H
        return {
            "x": _w((lambda *s: torch.randn(*s, dtype=torch.bfloat16) * 0.05)(B, S, D)),
            "wqkv": _w((lambda *s: torch.randn(*s, dtype=torch.bfloat16) * 0.8)(D, 3 * D)),
            "w_phi": _w((lambda *s: torch.randn(*s, dtype=torch.bfloat16) * 0.8)(H, Dh, Dh) * (Dh ** -0.5)),
            "wo": _w((lambda *s: torch.randn(*s, dtype=torch.bfloat16) * 0.05)(D, D)),
        }
    _A_in = _A_setup()

    def _B_setup():
        B, S, D, F = 1, 2048, 448, 1792
        return {
            "x": _w((lambda *s: torch.randn(*s, dtype=torch.bfloat16) * 0.05)(B, S, D)),
            "w1": _w((lambda *s: torch.randn(*s, dtype=torch.bfloat16) * 3.2)(D, F) * (D ** -0.5)),
            "w2": _w((lambda *s: torch.randn(*s, dtype=torch.bfloat16) * 0.2)(F, D) * (F ** -0.5)),
        }
    _B_in = _B_setup()

    return {
        "A_x": _A_in["x"],
        "A_wqkv": _A_in["wqkv"],
        "A_w_phi": _A_in["w_phi"],
        "A_wo": _A_in["wo"],
        "B_x": _B_in["x"],
        "B_w1": _B_in["w1"],
        "B_w2": _B_in["w2"],
        "gate_w": _w((lambda *s: torch.randn(*s, dtype=torch.bfloat16) * 0.05)(448) * 16.0),
    }

def reference(A_x, A_wqkv, A_w_phi, A_wo, B_x, B_w1, B_w2, gate_w):
    def _A_ref(x, wqkv, w_phi, wo):
        B, S, D = x.shape
        H = 16; Dh = D // H
        qkv = (lambda x, *d: x.permute(*d))((x @ wqkv).reshape(B, S, 3, H, Dh), 2, 0, 3, 1, 4)
        q, k, v = qkv[0], qkv[1], qkv[2]
        pq = torch.einsum("bhsd,hdf->bhsf", q, w_phi)
        pk = torch.einsum("bhsd,hdf->bhsf", k, w_phi)
        phi_q = torch.concatenate([_softmax(pq, axis=-1), _softmax(-pq, axis=-1)], axis=-1)
        phi_k = torch.concatenate([_softmax(pk, axis=-1), _softmax(-pk, axis=-1)], axis=-1)
        kv = torch.einsum("bhsf,bhsd->bhfd", phi_k, v)
        z  = torch.einsum("bhsf->bhf", phi_k)
        num = torch.einsum("bhqf,bhfd->bhqd", phi_q, kv)
        den = torch.einsum("bhqf,bhf->bhq", phi_q, z)[..., None] + 1e-6
        o = num / den
        return (lambda x, *d: x.permute(*d))(o, 0, 2, 1, 3).reshape(B, S, D) @ wo

    def _B_ref(x, w1, w2):
        h = torch.einsum("bsd,df->bsf", x, w1)
        h = _silu(h)
        out = torch.einsum("bsf,fd->bsd", h, w2)
        return out

    x = A_x
    g = _sigmoid((x * gate_w).sum(-1, keepdims=True))
    a = _A_ref(x, A_wqkv, A_w_phi, A_wo)
    b = _B_ref(x, B_w1, B_w2)
    return g * a + (1 - g) * b
```

```python
import re

TRANS = ("v_exp_f32","v_log_f32","v_rcp_f32","v_rsq_f32","v_sqrt_f32","v_sin_f32","v_cos_f32","v_rcp_iflag_f32")
REG_RE = re.compile(r"^(v|a|s)(\d+)$|^(v|a|s)\[(\d+):(\d+)\]$")

def regs_of(tok):
    tok = tok.strip()
    neg = tok.lstrip("-")
    if neg.startswith("abs(") and neg.endswith(")"): neg = neg[4:-1]
    if neg.startswith("|") and neg.endswith("|"): neg = neg[1:-1]
    m = REG_RE.match(neg)
    if m:
        if m.group(1): return [(m.group(1), int(m.group(2)))]
        return [(m.group(3), i) for i in range(int(m.group(4)), int(m.group(5))+1)]
    if neg == "vcc": return [("s","vcc_lo"),("s","vcc_hi")]
    if neg in ("vcc_lo","vcc_hi"): return [("s",neg)]
    if neg == "exec": return [("s","exec_lo"),("s","exec_hi")]
    if neg in ("exec_lo","exec_hi"): return [("s",neg)]
    if neg == "m0": return [("s","m0")]
    if neg == "scc": return [("s","scc")]
    return []

class Ins:
    __slots__ = ("text","mn","ops","mods","w","r","kind","passes","cm")
    def __init__(self, text):
        self.text = text
        body = text.split(";")[0].strip()
        parts = body.split(None, 1)
        self.mn = parts[0]
        rest = parts[1] if len(parts) > 1 else ""
        toks = [t.strip() for t in rest.split(",")] if rest else []
        mods = []
        if toks:
            last = toks[-1].split()
            toks[-1] = last[0] if last else ""
            mods = last[1:]
        self.ops = toks; self.mods = mods
        self.classify()
    def classify(self):
        mn, ops = self.mn, self.ops
        R = lambda idxs: [x for i in idxs if i < len(ops) for x in regs_of(ops[i])]
        allidx = list(range(len(ops)))
        self.passes = 0
        w, r = [], []
        if mn.startswith("v_mfma"):
            self.kind = "mfma"; w = R([0]); r = R([1,2,3])
            self.passes = 8 if "32x32x16" in mn or "32x32x8" in mn else 4 if ("16x16x32" in mn or "16x16x16" in mn) else 16
        elif mn.startswith("v_cmp"):
            self.kind = "valu"; w = R([0]); r = R(allidx[1:])
        elif mn.startswith("v_readfirstlane") or mn.startswith("v_readlane"):
            self.kind = "valu"; w = R([0]); r = R(allidx[1:])
        elif mn.startswith("v_permlane") and "swap" in mn:
            self.kind = "valu"; w = R([0,1]); r = R([0,1])
        elif mn.startswith("v_add_co") or mn.startswith("v_sub_co") or mn.startswith("v_addc_co") or mn.startswith("v_subb_co"):
            self.kind = "valu"; w = R([0,1]); r = R(allidx[2:])
        elif mn.startswith("v_fmac") or mn.startswith("v_dot2c") or mn.startswith("v_pk_fmac") or mn.startswith("v_writelane"):
            self.kind = "valu"; w = R([0]); r = R(allidx)
        elif mn.startswith("v_nop"):
            self.kind = "valu"
        elif mn.startswith("v_"):
            self.kind = "valu"; w = R([0]); r = R(allidx[1:])
            if "dpp" in mn or any(m.startswith(("row_","quad_perm","wave_")) for m in self.mods): r = r + (R([0]))
        elif mn.startswith("ds_read") or mn.startswith("ds_bpermute") or mn.startswith("ds_permute") or mn.startswith("ds_swizzle"):
            self.kind = "ds"; w = R([0]); r = R(allidx[1:])
        elif mn.startswith("ds_"):
            self.kind = "ds"; r = R(allidx)
        elif mn.startswith("buffer_load") or mn.startswith("global_load"):
            self.kind = "vmem"
            if "lds" in self.mods or "_lds_" in mn: r = R(allidx) + [("s","m0")]
            else: w = R([0]); r = R(allidx[1:])
        elif mn.startswith("buffer_store") or mn.startswith("global_store"):
            self.kind = "vmem"; r = R(allidx)
        elif mn.startswith("buffer_atomic") or mn.startswith("global_atomic"):
            self.kind = "vmem"; r = R(allidx)
            if "sc0" in self.mods: w = R([0])
        elif mn.startswith("buffer_inv") or mn.startswith("buffer_wbl2"):
            self.kind = "vmem"
        elif mn.startswith("s_load") or mn.startswith("s_memtime") or mn.startswith("s_memrealtime") or mn.startswith("s_buffer_load"):
            self.kind = "smem"; w = R([0]); r = R(allidx[1:])
        elif mn.startswith("s_cmp") or mn.startswith("s_bitcmp"):
            self.kind = "salu"; r = R(allidx); w = [("s","scc")]
        elif mn.startswith("s_cbranch") or mn.startswith("s_branch"):
            self.kind = "branch"
            if "vcc" in mn: r = regs_of("vcc")
            if "exec" in mn: r = regs_of("exec")
        elif mn in ("s_waitcnt","s_nop","s_barrier","s_sleep","s_setprio","s_endpgm","s_sethalt","s_inst_prefetch"):
            self.kind = mn[2:]
        elif mn.startswith("s_"):
            self.kind = "salu"; w = R([0]); r = R(allidx[1:])
            if "saveexec" in mn: w = w + regs_of("exec"); r = r + regs_of("exec")
            if mn.startswith(("s_addk","s_mulk","s_cmov","s_bitset")): r = r + R([0])
        else:
            raise ValueError("unknown instr: " + self.text)
        self.w = w; self.r = r
    def is_trans(self): return self.mn.replace("_e32","").replace("_e64","") in TRANS

class Emitter:
    def __init__(self, check=True):
        self.out = []
        self.check = check
        self.uid = 0
    def __call__(self, text):
        for line in text.strip("\n").split("\n"):
            s = line.strip()
            if not s: continue
            if s.startswith(";") or s.startswith(".") or s.endswith(":"):
                self.out.append(s)
            else:
                self.out.append(Ins(s))
    def label(self, name): self.out.append(name + ":")
    def c(self, text): self.out.append("; " + text)
    def newlabel(self, base):
        self.uid += 1
        return f"{base}_{self.uid}"

    def finalize(self):
        res = []
        hist = []
        pos = 0
        nops = 0
        def need(ins):
            n = 0
            rv = set(x for x in ins.r if x[0] in "va"); wv = set(x for x in ins.w if x[0] in "va")
            rs = set(x for x in ins.r if x[0] == "s")
            for (p, pr) in reversed(hist):
                have = pos - p - 1
                if have >= 20: break
                req = 0
                pw = set(pr.w)
                pwv = set(x for x in pw if x[0] in "va"); pws = set(x for x in pw if x[0]=="s")
                if pr.kind == "valu":
                    if ins.kind == "mfma" and (pwv & rv): req = max(req, 2)
                    if pr.is_trans() and ins.kind in ("valu","vmem","ds") and not ins.is_trans() and (pwv & rv): req = max(req, 1)
                    if pr.is_trans() and ins.kind == "valu" and (pwv & (rv)): req = max(req, 1)
                    if ins.kind == "valu" and ins.mn.startswith("v_permlane") and (pwv & rv): req = max(req, 2)
                    if ins.kind == "valu" and (ins.mn.startswith("v_readfirstlane") or ins.mn.startswith("v_readlane")) and (pwv & rv): req = max(req, 1)
                    if ins.kind == "valu" and ("dpp" in ins.mn or any(m.startswith(("row_","quad_perm","wave_")) for m in ins.mods)) and (pwv & rv): req = max(req, 2)
                    if pr.mn.startswith("v_dot") and ins.kind in ("valu","mfma","vmem","ds") and (pwv & (rv | wv)):
                        same_c = (ins.mn == pr.mn) and not (pwv & set(x for o in ins.ops[1:3] for x in regs_of(o)))
                        if not same_c: req = max(req, 3)
                    if pws:
                        if ins.kind == "valu" and (pws & rs): req = max(req, 4 if ins.mn.startswith(("v_readlane","v_writelane")) else 2)
                        if ins.kind == "vmem" and (pws & rs): req = max(req, 5)
                        if ins.kind in ("salu","branch") and (pws & rs): req = max(req, 1)
                    if ("sdwa" in pr.mn or any(m.startswith("op_sel") for m in pr.mods) or any("_sel" in m for m in pr.mods)) and ins.kind in ("valu","mfma") and (pwv & (rv|wv)): req = max(req, 1)
                if pr.kind == "mfma":
                    P = pr.passes
                    if ins.kind == "mfma":
                        c_regs = set(regs_of(ins.ops[3])); ab = set(regs_of(ins.ops[1])) | set(regs_of(ins.ops[2]))
                        if pwv & ab: req = max(req, P+4)
                        if pwv & c_regs:
                            if not (c_regs == pwv and ins.passes == P): req = max(req, P+2)
                        if (pwv & wv) and not (wv == pwv): req = max(req, P+2)
                        if (pwv & wv) and not (pwv & c_regs): req = max(req, P+2)
                    elif ins.kind in ("valu","vmem","ds"):
                        if pwv & (rv | wv): req = max(req, P+4)
                    if ins.kind == "valu":
                        c_regs = set(regs_of(pr.ops[3]))
                        if c_regs & wv: req = max(req, P-1)
                if pr.kind == "salu" and ("s","m0") in pw and ins.kind == "vmem" and ("s","m0") in rs: req = max(req, 1)
                if pr.kind == "vmem" and pr.mn.startswith(("buffer_store_dwordx4","buffer_store_dwordx3","global_store_dwordx4","global_store_dwordx3")):
                    data = set(regs_of(pr.ops[0] if pr.mn.startswith("buffer") else pr.ops[1]))
                    if data & wv: req = max(req, 2 if ins.kind == "valu" else 1)
                n = max(n, req - have)
            return n
        for item in self.out:
            if isinstance(item, str):
                res.append(item)
                continue
            ins = item
            n = need(ins)
            if ins.kind == "branch" or ins.kind == "endpgm":
                worst = 0
                for (p, pr) in reversed(hist):
                    have = pos - p - 1
                    if have >= 20: break
                    if pr.kind == "mfma": worst = max(worst, pr.passes + 4 - have - 1)
                    elif pr.kind == "valu": worst = max(worst, (5 if any(x[0]=="s" for x in pr.w) else 2) - have - 1)
                if ins.kind == "branch": n = max(n, worst)
            while n > 0:
                k = min(n, 16)
                res.append(Ins(f"s_nop {k-1}")); hist.append((pos + k - 1, res[-1])); pos += k; n -= k; nops += 1
            res.append(ins)
            if ins.mn == "s_nop":
                k = int(ins.ops[0]) + 1
                hist.append((pos + k - 1, ins)); pos += k
            else:
                hist.append((pos, ins)); pos += 1
            if len(hist) > 64: hist = hist[-40:]
        self.nops = nops
        return res

    def text(self):
        res = self.finalize()
        if self.check: check_waits(res)
        lines = []
        for it in res:
            if isinstance(it, str): lines.append(it if (it.endswith(":") or it.startswith((".",";"))) else it)
            else: lines.append("  " + it.text)
        return "\n".join(lines) + "\n"

def parse_wait(ins):
    t = ins.text
    vm = re.search(r"vmcnt\((\d+)\)", t); lg = re.search(r"lgkmcnt\((\d+)\)", t)
    return (int(vm.group(1)) if vm else None, int(lg.group(1)) if lg else None)

def check_waits(res):
    vq = []; lq = []
    errs = 0
    for it in res:
        if isinstance(it, str):
            continue
        ins = it
        if ins.kind == "waitcnt":
            vm, lg = parse_wait(ins)
            if vm is not None:
                while len(vq) > vm: vq.pop(0)
            if lg is not None:
                if any(k == "smem" for k, _ in lq):
                    if lg == 0: lq = []
                else:
                    while len(lq) > lg: lq.pop(0)
            continue
        touched = set(ins.r) | set(ins.w)
        for q, name in ((vq, "vmcnt"), (lq, "lgkmcnt")):
            for k, d in q:
                if d & touched:
                    print(f"WAIT-CHECK: '{ins.text}' touches {sorted(d & touched)[:4]} with outstanding {name} op"); errs += 1
        if ins.kind == "vmem": vq.append(("vmem", set(ins.w)))
        elif ins.kind == "ds": lq.append(("ds", set(ins.w)))
        elif ins.kind == "smem": lq.append(("smem", set(ins.w)))
        if len(vq) > 63: print("WAIT-CHECK: vmcnt overflow (>63 outstanding) at", ins.text); errs += 1; vq.pop(0)
    if errs: print(f"WAIT-CHECK: {errs} problems")
    return errs
```

```python
import sys, math
sys.path.insert(0, "gen")
from emit import Emitter

KNAME = "gated_mix__linear_kernel_hedgehog__dense_activation_silu__prompt_kernel"

ACT_STEPS = 144
ACT_T32   = ACT_STEPS * 1024
WS_ACT    = 0
WS_PART   = 0xA00000
WS_FH     = 0xD00000
WS_FP     = WS_FH + 16*128
WS_FO     = WS_FP + 8*128
WS_STAMP  = 0xE00000

LOG2E = 0x3fb8aa3b
NLOG2E = 0xbfb8aa3b

S_WG=2; S_W=3
SRD_X="s[8:11]"; SRD_W1="s[12:15]"; SRD_W2="s[16:19]"; SRD_WO="s[20:23]"; SRD_WS="s[24:27]"; SRD_OUT="s[28:31]"
SRD_DBG="s[32:35]"; SRD_PHI="s[36:39]"; SRD_GATE="s[40:43]"
S_I=44; S_SL=45; S_T=46; S_C=47; S_NONCE=48; S_LI=49
S_T0=50; S_T1=51; S_T2=52; S_T3=53; S_T4=54; S_T5=55
S_XB=56; S_XL=57; S_WB=58; S_WL=59
S_HH="s[60:61]"
S_L=62; S_NL=63
S_M28="s[80:81]"
S_GE28="s[82:83]"
S_A0=84; S_A1=85; S_A2=86; S_A3=87; S_TMO=88; S_STP=89

class VM:
    def __init__(self, e): self.e = e; self.q = []
    def issue(self, tag, text):
        self.e(text); self.q.append(tag)
    def n_after(self, tags):
        idx = max(i for i, t in enumerate(self.q) if t in tags)
        return len(self.q) - 1 - idx
    def wait(self, tags, extra=""):
        if isinstance(tags, str): tags = [tags]
        for t in tags: assert t in self.q, t
        n = self.n_after(set(tags))
        assert n <= 63
        self.e(f"s_waitcnt vmcnt({n}) {extra}".strip())
    def drain(self, extra=""):
        self.e(f"s_waitcnt vmcnt(0) {extra}".strip()); self.q = []

class Gen:
    def __init__(self, diag=False, opts=None):
        self.e = Emitter()
        self.diag = diag
        self.o = dict(R2=8)
        if opts: self.o.update(opts)
        self.nstamp = 0

    def stamp(self, idx):
        if not self.diag: return
        e = self.e
        e(f"s_memrealtime s[90:91]\ns_waitcnt lgkmcnt(0)\ns_mov_b32 s{64+idx}, s90")

    def diag_clear(self):
        if not self.diag: return
        for i in range(65, 80): self.e(f"s_mov_b32 s{i}, 0")

    def write_stamps(self, n=16):
        if not self.diag: return
        e = self.e
        L = e.newlabel("L_nostamp")
        e(f"s_cmp_lg_u32 s{S_W}, 0\ns_cbranch_scc1 {L}")
        e(f"s_lshl_b32 s{S_T0}, s{S_WG}, 8\ns_add_u32 s{S_T0}, s{S_T0}, {WS_STAMP}\nv_mov_b32 v254, 0")
        for i in range(n):
            e(f"v_mov_b32 v255, s{64+i}\nbuffer_store_dword v255, v254, {SRD_WS}, s{S_T0} offen offset:{4*i}\ns_nop 1")
        e("s_waitcnt vmcnt(0)")
        e.label(L)

    def prologue(self):
        e = self.e
        e(f"""
s_cmp_ge_u32 s2, 256
s_cbranch_scc1 L_end
s_load_dwordx16 s[64:79], s[0:1], 0
s_load_dwordx4 s[4:7], s[0:1], 64
s_load_dwordx2 s[24:25], s[0:1], 80
s_memrealtime s[90:91]
s_getpc_b64 s[92:93]
s_and_b32 s92, s92, 0xffffff00
v_and_b32 v1, 63, v0
v_lshrrev_b32 v2, 6, v0
s_lshr_b32 s{S_LI}, s2, 3
v_readfirstlane_b32 s{S_W}, v2
v_mov_b32 v0, v1
s_lshl_b32 s{S_T0}, s{S_LI}, 11
v_lshlrev_b32 v3, 7, v0
v_add_u32 v3, s{S_T0}, v3
""")
        e(f"""
s_cmp_lg_u32 s{S_W}, 7
s_cbranch_scc1 L_nopf
v_cmp_gt_u32 vcc, CODE_BYTES, v3
s_and_b64 exec, vcc, 0xffff
s_cbranch_execz L_nopf2
global_load_dword v7, v3, s[92:93]
L_nopf2:
s_mov_b64 exec, -1
L_nopf:
""")
        e(f"""
s_and_b32 s{S_T0}, s2, 7
s_lshr_b32 s{S_T1}, s{S_T0}, 1
s_and_b32 s{S_T2}, s{S_T0}, 1
s_and_b32 s{S_T3}, s{S_LI}, 15
s_lshr_b32 s{S_T4}, s{S_T3}, 2
s_lshl_b32 s{S_I}, s{S_T1}, 2
s_add_u32 s{S_I}, s{S_I}, s{S_T4}
s_and_b32 s{S_T4}, s{S_T3}, 3
s_lshl_b32 s{S_SL}, s{S_T2}, 2
s_add_u32 s{S_SL}, s{S_SL}, s{S_T4}
s_mul_i32 s{S_T1}, s{S_LI}, 37
s_lshr_b32 s{S_T1}, s{S_T1}, 8
s_mul_i32 s{S_T2}, s{S_T1}, 7
s_sub_u32 s{S_C}, s{S_LI}, s{S_T2}
s_lshl_b32 s{S_T}, s{S_T0}, 2
s_add_u32 s{S_T}, s{S_T}, s{S_T1}
s_mov_b32 s{S_L}, {hex(LOG2E)}
s_mov_b32 s{S_NL}, {hex(NLOG2E)}
s_mov_b32 s60, 0
s_mov_b32 s61, -1
s_mov_b32 s80, 0x10000000
s_mov_b32 s81, 0x10000000
s_mov_b32 s82, 0xf0000000
s_mov_b32 s83, 0xf0000000
s_mov_b32 s10, {2048*448*2}
s_mov_b32 s11, 0x00020000
s_mov_b32 s15, 0x00020000
s_mov_b32 s18, {1792*448*2}
s_mov_b32 s19, 0x00020000
s_mov_b32 s22, {448*448*2}
s_mov_b32 s23, 0x00020000
s_mov_b32 s26, 0x10000000
s_mov_b32 s27, 0x00020000
s_mov_b32 s30, {2048*448*2}
s_mov_b32 s31, 0x00020000
s_mov_b32 s34, 256
s_mov_b32 s35, 0x00020000
s_mov_b32 s38, {16*28*28*2}
s_mov_b32 s39, 0x00020000
s_mov_b32 s42, 896
s_mov_b32 s43, 0x00020000
s_waitcnt lgkmcnt(0)
s_mov_b32 s8, s64
s_mov_b32 s9, s65
s_mov_b32 s16, s76
s_mov_b32 s17, s77
s_mov_b32 s20, s70
s_mov_b32 s21, s71
s_mov_b32 s28, s4
s_mov_b32 s29, s5
s_mov_b32 s32, s6
s_mov_b32 s33, s7
s_mov_b32 s36, s68
s_mov_b32 s37, s69
s_mov_b32 s40, s78
s_mov_b32 s41, s79
s_or_b32 s{S_NONCE}, s90, 1
""")
        e(f"""
s_or_b32 s{S_T0}, s2, s{S_W}
s_cmp_lg_u32 s{S_T0}, 0
s_cbranch_scc1 L_nononce
v_mov_b32 v4, s{S_NONCE}
v_mov_b32 v5, 0
s_mov_b64 exec, 1
buffer_store_dword v4, v5, {SRD_DBG}, 0 offen sc1
s_mov_b64 exec, -1
L_nononce:
""")
        self.stamp(0)
        e(f"""
s_cmp_ge_u32 s{S_LI}, 16
s_cbranch_scc1 L_att
""")

    def x_dma_setup(self, vxo0, vxo1, t0, t1):
        e = self.e
        e(f"""
v_lshrrev_b32 v{t0}, 3, v0
v_and_b32 v{t1}, 7, v0
v_lshrrev_b32 v{vxo1}, 1, v{t0}
v_xor_b32 v{t1}, v{t1}, v{vxo1}
v_mul_u32_u24 v{t0}, 896, v{t0}
v_lshl_add_u32 v{vxo0}, v{t1}, 4, v{t0}
v_xor_b32 v{t1}, 4, v{t1}
v_lshl_add_u32 v{vxo1}, v{t1}, 4, v{t0}
v_add_u32 v{vxo1}, {8*896}, v{vxo1}
s_lshl_b32 s{S_T0}, s{S_I}, 7
s_lshl_b32 s{S_T1}, s{S_W}, 4
s_add_u32 s{S_T0}, s{S_T0}, s{S_T1}
s_mul_i32 s{S_XB}, s{S_T0}, 896
s_lshl_b32 s{S_XL}, s{S_W}, 11
""")
    def x_dma(self, vm, st, ldsbase, vxo0, vxo1):
        e = self.e
        for p, v in ((0, vxo0), (1, vxo1)):
            e(f"s_add_u32 s{S_T0}, s{S_XB}, {128*st}\ns_add_u32 m0, s{S_XL}, {ldsbase + 1024*p}")
            vm.issue(f"x{st}", f"buffer_load_dwordx4 v{v}, {SRD_X}, s{S_T0} offen lds")

    def x_read_setup(self, vxr, tg_expr_sgpr, t0, t1, t2):
        e = self.e
        e(f"""
v_and_b32 v{t0}, 31, v0
v_lshrrev_b32 v{t1}, 5, v0
v_lshrrev_b32 v{t2}, 1, v{t0}
v_and_b32 v{t2}, 7, v{t2}
v_xor_b32 v{t1}, v{t1}, v{t2}
v_lshlrev_b32 v{t0}, 7, v{t0}
s_lshl_b32 s{S_T0}, s{tg_expr_sgpr}, 12
v_add_u32 v{t0}, s{S_T0}, v{t0}
""")
        for ks in range(4):
            e(f"v_xor_b32 v{t2}, {2*ks}, v{t1}\nv_lshl_add_u32 v{vxr+ks}, v{t2}, 4, v{t0}")

    def get_nonce_and_flag(self, vm, flag_soff_sgpr, first):
        e = self.e
        L = e.newlabel("L_noflag")
        e(f"s_cmp_lg_u32 s{S_W}, 0\ns_cbranch_scc1 {L}")
        if first:
            Lp = e.newlabel("L_nonce"); Ld = e.newlabel("L_nonce_done")
            e(f"s_mov_b32 s{S_TMO}, 0x40000\nv_mov_b32 v2, 0")
            e.label(Lp)
            e(f"""
buffer_load_dword v3, v2, {SRD_DBG}, 0 offen sc1
s_waitcnt vmcnt(0)
v_readfirstlane_b32 s{S_NONCE}, v3
s_sub_u32 s{S_TMO}, s{S_TMO}, 1
s_cmp_eq_u32 s{S_TMO}, 0
s_cbranch_scc1 {Ld}
s_cmp_eq_u32 s{S_NONCE}, 0
s_cbranch_scc1 {Lp}
""")
            e.label(Ld)
        e(f"""
v_mov_b32 v3, s{S_NONCE}
v_mov_b32 v2, 0
s_mov_b64 exec, 1
buffer_store_dword v3, v2, {SRD_WS}, s{flag_soff_sgpr} offen sc1
s_mov_b64 exec, -1
""")
        e.label(L)

    def poll_flags(self, flag_soff_sgpr, nflags):
        e = self.e
        L = e.newlabel("L_nopoll"); Lp = e.newlabel("L_poll")
        e(f"s_cmp_lg_u32 s{S_W}, 0\ns_cbranch_scc1 {L}")
        e(f"v_and_b32 v2, {nflags-1}, v0\nv_lshlrev_b32 v2, 2, v2\ns_mov_b32 s{S_TMO}, 0x40000")
        e.label(Lp)
        e(f"""
buffer_load_dword v3, v2, {SRD_WS}, s{flag_soff_sgpr} offen sc1
s_waitcnt vmcnt(0)
v_cmp_ne_u32 vcc, s{S_NONCE}, v3
s_sub_u32 s{S_TMO}, s{S_TMO}, 1
s_cmp_eq_u32 s{S_TMO}, 0
s_cbranch_scc1 {L}
s_cmp_eq_u64 vcc, 0
s_cbranch_scc0 {Lp}
""")
        e.label(L)
        e("s_barrier")

    V2_ACT=240; V2_W=241; V2_B=242; V2_A=243; V2_BC=244; V2_AC=245
    def p2_setup(self):
        e = self.e
        e(f"""
v_lshlrev_b32 v{self.V2_ACT}, 4, v0
v_lshrrev_b32 v1, 3, v0
v_and_b32 v2, 7, v0
v_lshrrev_b32 v3, 1, v1
v_and_b32 v3, 1, v3
v_lshlrev_b32 v3, 2, v3
v_xor_b32 v2, v2, v3
v_mul_u32_u24 v1, 896, v1
v_lshl_add_u32 v{self.V2_W}, v2, 4, v1
s_lshr_b32 s{S_T0}, s{S_W}, 2
s_lshl_b32 s{S_T1}, s{S_T}, 1
s_add_u32 s{S_T1}, s{S_T1}, s{S_T0}
s_mul_i32 s{S_T1}, s{S_T1}, {ACT_STEPS}
s_and_b32 s{S_T2}, s{S_W}, 3
s_add_u32 s{S_T1}, s{S_T1}, s{S_T2}
s_lshl_b32 s{S_A0}, s{S_T1}, 10
; w2 base: 8w*896 + 128c
s_lshl_b32 s{S_T3}, s{S_C}, 7
s_mul_i32 s{S_T1}, s{S_W}, {8*896}
s_add_u32 s{S_A1}, s{S_T1}, s{S_T3}
s_mul_i32 s{S_T1}, s{S_T0}, 28
s_lshl_b32 s{S_T2}, s{S_T2}, 3
s_add_u32 s{S_T1}, s{S_T1}, s{S_T2}
s_mul_i32 s{S_T1}, s{S_T1}, 896
s_add_u32 s{S_A2}, s{S_T1}, s{S_T3}
s_lshl_b32 s{S_A3}, s{S_W}, 10
s_and_b32 s{S_T1}, s{S_W}, 1
s_lshl_b32 s{S_T1}, s{S_T1}, 2
s_lshl_b32 s{S_T2}, s{S_T0}, 1
s_add_u32 s{S_T1}, s{S_T1}, s{S_T2}
s_lshl_b32 s{S_T1}, s{S_T1}, 10
v_add_u32 v{self.V2_B}, s{S_T1}, v{self.V2_ACT}
v_lshrrev_b32 v1, 5, v0
v_lshlrev_b32 v1, 2, v1
v_bfe_u32 v2, v0, 2, 2
v_add_u32 v1, v1, v2
v_lshlrev_b32 v1, 7, v1
v_bfe_u32 v3, v0, 4, 1
v_lshlrev_b32 v3, 1, v3
v_bfe_u32 v4, v0, 1, 1
v_add_u32 v3, v3, v4
v_lshrrev_b32 v2, 1, v2
v_lshlrev_b32 v2, 2, v2
s_lshr_b32 s{S_T1}, s{S_W}, 1
s_and_b32 s{S_T1}, s{S_T1}, 1
s_lshl_b32 s{S_T1}, s{S_T1}, 2
v_add_u32 v3, s{S_T1}, v3
v_xor_b32 v3, v3, v2
v_lshl_add_u32 v1, v3, 4, v1
v_and_b32 v4, 1, v0
v_lshl_add_u32 v1, v4, 3, v1
s_lshl_b32 s{S_T1}, s{S_T0}, 12
s_add_u32 s{S_T1}, s{S_T1}, 8192
v_add_u32 v{self.V2_A}, s{S_T1}, v1
""")
    def p2_w_dma(self, vm, st):
        e = self.e; R = self.o["R2"]
        slot = (st % R) * 16384
        if st < 28:
            e(f"s_add_u32 s{S_T0}, s{S_A1}, {64*st*896}\ns_add_u32 m0, s{S_A3}, {slot+8192}")
            vm.issue(f"W{st}", f"buffer_load_dwordx4 v{self.V2_W}, {SRD_W2}, s{S_T0} offen lds")
        else:
            e(f"s_add_u32 s{S_T0}, s{S_A2}, {56*(st-28)*896}\ns_add_u32 m0, s{S_A3}, {slot+8192}")
            vm.issue(f"W{st}", f"buffer_load_dwordx4 v{self.V2_W}, {SRD_WO}, s{S_T0} offen lds")
    def p2_a_dma(self, vm, st):
        e = self.e; R = self.o["R2"]
        slot = (st % R) * 16384
        e(f"s_add_u32 s{S_T0}, s{S_A0}, {4096*st}\ns_add_u32 m0, s{S_A3}, {slot}")
        vm.issue(f"A{st}", f"buffer_load_dwordx4 v{self.V2_ACT}, {SRD_WS}, s{S_T0} offen sc1 lds")

    def phase2(self):
        e = self.e; R = self.o["R2"]
        vm = VM(e)
        e.label("L_phase2")
        self.stamp(8)
        e(f"s_lshr_b32 s{S_T1}, s{S_T}, 1\ns_lshl_b32 s{S_T1}, s{S_T1}, 7\ns_add_u32 s{S_T1}, s{S_T1}, {WS_FH}")
        self.poll_flags(S_T1, 8)
        self.stamp(9)
        for st in range(R): vm.q.append(f"W{st}")
        for st in range(R): self.p2_a_dma(vm, st)
        ACC=16; BF=32; AF=48
        for r in range(16): e(f"v_mov_b32 v{ACC+r}, 0")
        NST = 36
        for st in range(NST):
            vm.wait([f"W{st}", f"A{st}"])
            e("s_barrier")
            nx = st - 1 + R
            if st >= 1 and nx < NST:
                if nx == 28:
                    e(f"s_lshr_b32 s{S_T1}, s{S_T}, 1\ns_lshl_b32 s{S_T1}, s{S_T1}, 7\ns_add_u32 s{S_T1}, s{S_T1}, {WS_FO}")
                    self.stamp(10)
                    self.poll_flags(S_T1, 8)
                    self.stamp(11)
                self.p2_w_dma(vm, nx); self.p2_a_dma(vm, nx)
            slot = (st % R) * 16384
            e(f"v_add_u32 v{self.V2_BC}, {slot}, v{self.V2_B}\nv_add_u32 v{self.V2_AC}, {slot}, v{self.V2_A}")
            for u in range(2):
                e(f"ds_read_b128 v[{BF+4*u}:{BF+4*u+3}], v{self.V2_BC} offset:{1024*u}")
                e(f"ds_read_b64_tr_b16 v[{AF+4*u}:{AF+4*u+1}], v{self.V2_AC} offset:{2048*u}")
                e(f"ds_read_b64_tr_b16 v[{AF+4*u+2}:{AF+4*u+3}], v{self.V2_AC} offset:{2048*u+1024}")
            for u in range(2):
                e(f"s_waitcnt lgkmcnt({3*(1-u)})")
                e(f"v_mfma_f32_32x32x16_bf16 v[{ACC}:{ACC+15}], v[{AF+4*u}:{AF+4*u+3}], v[{BF+4*u}:{BF+4*u+3}], v[{ACC}:{ACC+15}]")
        self.stamp(12)
        e("s_barrier")
        X=131072
        La = e.newlabel("L_kh1"); Lb = e.newlabel("L_khj")
        e(f"""
s_lshl_b32 s{S_T0}, s{S_W}, 11
s_add_u32 s{S_T0}, s{S_T0}, {X}
v_lshlrev_b32 v1, 4, v0
v_add_u32 v2, s{S_T0}, v1
s_xor_b32 s{S_T1}, s{S_W}, 4
s_lshl_b32 s{S_T1}, s{S_T1}, 11
s_add_u32 s{S_T1}, s{S_T1}, {X}
v_add_u32 v3, s{S_T1}, v1
s_cmp_ge_u32 s{S_W}, 4
s_cbranch_scc1 {La}
ds_write_b128 v2, v[{ACC+8}:{ACC+11}]
ds_write_b128 v2, v[{ACC+12}:{ACC+15}] offset:1024
s_branch {Lb}
""")
        e.label(La)
        e(f"""
ds_write_b128 v2, v[{ACC}:{ACC+3}]
ds_write_b128 v2, v[{ACC+4}:{ACC+7}] offset:1024
""")
        for r in range(8): e(f"v_mov_b32 v{ACC+r}, v{ACC+8+r}")
        e.label(Lb)
        e(f"""
s_waitcnt lgkmcnt(0)
s_barrier
ds_read_b128 v[32:35], v3
ds_read_b128 v[36:39], v3 offset:1024
v_and_b32 v4, 31, v0
s_lshl_b32 s{S_T0}, s{S_T}, 6
s_and_b32 s{S_T1}, s{S_W}, 1
s_lshl_b32 s{S_T1}, s{S_T1}, 5
s_add_u32 s{S_T0}, s{S_T0}, s{S_T1}
v_add_u32 v4, s{S_T0}, v4
v_mul_u32_u24 v4, 896, v4
v_lshrrev_b32 v5, 5, v0
v_lshl_add_u32 v4, v5, 4, v4
s_lshl_b32 s{S_T0}, s{S_C}, 7
s_lshr_b32 s{S_T1}, s{S_W}, 1
s_and_b32 s{S_T1}, s{S_T1}, 1
s_lshl_b32 s{S_T1}, s{S_T1}, 6
s_add_u32 s{S_T0}, s{S_T0}, s{S_T1}
s_lshr_b32 s{S_T1}, s{S_W}, 2
s_lshl_b32 s{S_T1}, s{S_T1}, 5
s_add_u32 s{S_T0}, s{S_T0}, s{S_T1}
s_waitcnt lgkmcnt(0)
""")
        for r in range(8): e(f"v_add_f32 v{ACC+r}, v{ACC+r}, v{32+r}")
        for j in range(4): e(f"v_cvt_pk_bf16_f32 v{40+j}, v{ACC+2*j}, v{ACC+2*j+1}")
        e("v_permlane32_swap_b32 v40, v42\nv_permlane32_swap_b32 v41, v43")
        e(f"buffer_store_dwordx4 v[40:43], v4, {SRD_OUT}, s{S_T0} offen")
        self.stamp(13)

    def ffn(self):
        e = self.e
        VXO0=10; VXO1=11; VWO0=12; VWO1=13; VXR=14; VWR=18; VXC=22; VWC=26; VG=30; Z0=31; Z1=32; VC=33
        XF=34; GF=42; WF=50; ACC=84
        GATE=147456; CX=GATE+1024
        e(f"s_mov_b32 s12, s74\ns_mov_b32 s13, s75\ns_mov_b32 s14, {448*1792*2}")
        self.diag_clear()
        self.x_dma_setup(VXO0, VXO1, 1, 2)
        e(f"""
v_lshrrev_b32 v1, 5, v0
v_and_b32 v2, 31, v0
v_lshlrev_b32 v3, 2, v1
v_xor_b32 v3, v2, v3
v_mul_u32_u24 v4, 3584, v1
v_lshl_add_u32 v{VWO0}, v3, 4, v4
v_xor_b32 v3, 8, v3
v_lshl_add_u32 v{VWO1}, v3, 4, v4
s_mul_i32 s{S_T0}, s{S_SL}, 448
s_and_b32 s{S_T1}, s{S_SL}, 1
s_lshl_b32 s{S_T2}, s{S_T1}, 6
s_sub_u32 s{S_T0}, s{S_T0}, s{S_T2}
s_mul_i32 s{S_T2}, s{S_W}, {8*3584}
s_add_u32 s{S_WB}, s{S_T0}, s{S_T2}
s_lshl_b32 s{S_WL}, s{S_W}, 12
""")
        def w_dma(vm, st, j):
            slot = (st % 3) * 49152
            e(f"s_add_u32 s{S_T0}, s{S_WB}, {(64*st + 2*j)*3584}\ns_add_u32 m0, s{S_WL}, {slot + 16384 + 1024*j}")
            vm.issue(f"w{st}", f"buffer_load_dwordx4 v{VWO0 + (j&1)}, {SRD_W1}, s{S_T0} offen lds")
        LB = "L_ffn_b"
        e(f"s_cmp_ge_u32 s{S_W}, 4\ns_cbranch_scc1 {LB}")
        for variant in (0, 1):
            if variant == 1: e.label(LB)
            nt = 4 if variant == 0 else 3
            ct0 = 0 if variant == 0 else 4
            vm = VM(e)
            for st in range(3):
                self.x_dma(vm, st, (st % 3)*49152, VXO0, VXO1)
                for j in range(4): w_dma(vm, st, j)
                if variant == 1 and st == 0:
                    e(f"v_lshlrev_b32 v1, 4, v0\ns_mov_b32 m0, {GATE}")
                    vm.issue("x0", f"buffer_load_dwordx4 v1, {SRD_GATE}, 0 offen lds")
            e(f"s_and_b32 s{S_T5}, s{S_W}, 3")
            self.x_read_setup(VXR, S_T5, 1, 2, 3)
            e(f"""
v_lshrrev_b32 v1, 5, v0
v_bfe_u32 v2, v0, 2, 2
v_lshl_add_u32 v1, v1, 3, v2
v_lshlrev_b32 v1, 9, v1
v_bfe_u32 v3, v0, 4, 1
v_lshlrev_b32 v3, 1, v3
v_bfe_u32 v4, v0, 1, 1
v_add_u32 v3, v3, v4
v_lshl_add_u32 v1, v3, 4, v1
v_and_b32 v4, 1, v0
v_lshl_add_u32 v1, v4, 3, v1
v_add_u32 v1, 16384, v1
s_and_b32 s{S_T1}, s{S_SL}, 1
""")
            for j in range(nt):
                e(f"""
s_add_u32 s{S_T2}, s{S_T1}, {ct0 + j}
s_and_b32 s{S_T3}, s{S_T2}, 3
s_lshr_b32 s{S_T2}, s{S_T2}, 2
s_lshl_b32 s{S_T2}, s{S_T2}, 8
v_xor_b32 v4, s{S_T3}, v2
v_lshl_add_u32 v4, v4, 6, v1
v_add_u32 v{VWR+j}, s{S_T2}, v4
""")
            if variant == 1:
                e(f"v_lshrrev_b32 v1, 5, v0\nv_lshlrev_b32 v1, 4, v1\nv_add_u32 v{VG}, {GATE}, v1\nv_mov_b32 v{Z0}, 0\nv_mov_b32 v{Z1}, 0")
            for j in range(nt):
                for r in range(16): e(f"v_mov_b32 v{ACC+16*j+r}, 0")
            self.p2_setup()
            def set_slot(st):
                slot = (st % 3) * 49152
                for ks in range(4): e(f"v_add_u32 v{VXC+ks}, {slot}, v{VXR+ks}")
                for j in range(nt): e(f"v_add_u32 v{VWC+j}, {slot}, v{VWR+j}")
            def reads(st, ks):
                b = ks & 1
                e(f"ds_read_b128 v[{XF+4*b}:{XF+4*b+3}], v{VXC+ks}")
                n = 1
                for j in range(nt):
                    base = WF + 16*b + 4*j
                    e(f"ds_read_b64_tr_b16 v[{base}:{base+1}], v{VWC+j} offset:{ks*8192}")
                    e(f"ds_read_b64_tr_b16 v[{base+2}:{base+3}], v{VWC+j} offset:{ks*8192+2048}")
                    n += 2
                if variant == 1:
                    e(f"ds_read_b128 v[{GF+4*b}:{GF+4*b+3}], v{VG} offset:{(4*st+ks)*32}")
                    n += 1
                return n
            def mfmas(st, ks, fill=None):
                b = ks & 1
                for j in range(nt):
                    base = WF + 16*b + 4*j
                    a = ACC + 16*j
                    e(f"v_mfma_f32_32x32x16_bf16 v[{a}:{a+15}], v[{base}:{base+3}], v[{XF+4*b}:{XF+4*b+3}], v[{a}:{a+15}]")
                    if fill:
                        for f in fill[j]: f()
                if variant == 1:
                    for d in range(4):
                        z = Z0 + (d & 1)
                        e(f"v_dot2c_f32_bf16 v{z}, v{XF+4*b+d}, v{GF+4*b+d}")
            vm.wait(["x0", "w0"])
            e("s_barrier")
            self.stamp(1)
            set_slot(0)
            reads(0, 0)
            for st in range(7):
                for ks in range(4):
                    if ks < 3:
                        n = reads(st, ks+1)
                        e(f"s_waitcnt lgkmcnt({n})")
                        mfmas(st, ks)
                    elif st < 6:
                        vm.wait([f"x{st+1}", f"w{st+1}"], "lgkmcnt(0)")
                        e("s_barrier")
                        set_slot(st+1)
                        reads(st+1, 0)
                        fill = [[] for _ in range(nt)]
                        if st + 3 <= 6:
                            jobs = [lambda s=st+3: self.x_dma(vm, s, (s % 3)*49152, VXO0, VXO1)] + [lambda s=st+3, j=j: w_dma(vm, s, j) for j in range(4)]
                            for k, jb in enumerate(jobs): fill[min(k*nt//len(jobs), nt-1)].append(jb)
                        mfmas(st, 3, fill)
                    else:
                        e("s_waitcnt lgkmcnt(0)")
                        mfmas(st, 3)
            self.stamp(2)
            if variant == 1:
                e(f"""
v_add_f32 v{Z0}, v{Z0}, v{Z1}
v_mov_b32 v{Z1}, v{Z0}
v_permlane32_swap_b32 v{Z0}, v{Z1}
v_add_f32 v{Z0}, v{Z0}, v{Z1}
v_mul_f32 v{Z0}, s{S_L}, v{Z0}
v_exp_f32 v{Z0}, v{Z0}
v_add_f32 v{VC}, 1.0, v{Z0}
v_min_f32 v{VC}, 0x7149f2ca, v{VC}
v_and_b32 v1, 31, v0
v_lshlrev_b32 v1, 2, v1
s_and_b32 s{S_T0}, s{S_W}, 3
s_lshl_b32 s{S_T0}, s{S_T0}, 7
s_add_u32 s{S_T0}, s{S_T0}, {CX}
v_add_u32 v1, s{S_T0}, v1
ds_write_b32 v1, v{VC}
s_waitcnt lgkmcnt(0)
s_barrier
""")
            else:
                e(f"""
v_and_b32 v1, 31, v0
v_lshlrev_b32 v1, 2, v1
s_and_b32 s{S_T0}, s{S_W}, 3
s_lshl_b32 s{S_T0}, s{S_T0}, 7
s_add_u32 s{S_T0}, s{S_T0}, {CX}
v_add_u32 v1, s{S_T0}, v1
s_barrier
ds_read_b32 v{VC}, v1
""")
            for st in range(self.o["R2"]): self.p2_w_dma(vm, st)
            e(f"""
s_lshl_b32 s{S_T0}, s{S_I}, 2
s_and_b32 s{S_T1}, s{S_W}, 3
s_add_u32 s{S_T0}, s{S_T0}, s{S_T1}
s_mul_i32 s{S_T0}, s{S_T0}, {ACT_STEPS}
s_mul_i32 s{S_T1}, s{S_SL}, 14
s_add_u32 s{S_T0}, s{S_T0}, s{S_T1}
s_add_u32 s{S_T0}, s{S_T0}, {2*ct0}
s_lshl_b32 s{S_T4}, s{S_T0}, 10
v_lshlrev_b32 v5, 4, v0
s_waitcnt lgkmcnt(0)
""")
            T=148; PK=180
            for j in range(nt):
                a = ACC + 16*j; t = T + 16*(j & 1); pk = PK + 8*j
                for r in range(16): e(f"v_mul_f32 v{t+r}, s{S_NL}, v{a+r}")
                for r in range(16): e(f"v_exp_f32 v{t+r}, v{t+r}")
                for r in range(16): e(f"v_fma_f32 v{t+r}, v{t+r}, v{VC}, v{VC}")
                for r in range(16): e(f"v_rcp_f32 v{t+r}, v{t+r}")
                for r in range(16): e(f"v_mul_f32 v{t+r}, v{a+r}, v{t+r}")
                for r in range(8): e(f"v_cvt_pk_bf16_f32 v{pk+r}, v{t+2*r}, v{t+2*r+1}")
                for u in range(2):
                    off = (2*j+u)*1024
                    e(f"s_add_u32 s{S_T3}, s{S_T4}, {off}")
                    vm.issue("h", f"buffer_store_dwordx4 v[{pk+4*u}:{pk+4*u+3}], v5, {SRD_WS}, s{S_T3} offen sc1")
            self.stamp(3)
            vm.drain()
            e("s_barrier")
            self.stamp(4)
            e(f"s_lshl_b32 s{S_T1}, s{S_I}, 7\ns_lshl_b32 s{S_T2}, s{S_SL}, 2\ns_add_u32 s{S_T1}, s{S_T1}, s{S_T2}\ns_add_u32 s{S_T1}, s{S_T1}, {WS_FH}")
            self.get_nonce_and_flag(vm, S_T1, True)
            e("s_branch L_phase2")

    def softmax(self, P, EP, EM, OP, OM, NINF, PINF, t):
        e = self.e
        m, n, a, b, c_, d = t, t+1, t+2, t+3, t+4, t+5
        for r in range(12, 16):
            e(f"v_cndmask_b32 v{EP+r}, v{P+r}, v{NINF}, {S_HH}")
            e(f"v_cndmask_b32 v{EM+r}, v{P+r}, v{PINF}, {S_HH}")
        srcp = [P+r for r in range(12)] + [EP+r for r in range(12,16)]
        srcm = [P+r for r in range(12)] + [EM+r for r in range(12,16)]
        e(f"v_max3_f32 v{m}, v{srcp[0]}, v{srcp[1]}, v{srcp[2]}\nv_min3_f32 v{n}, v{srcm[0]}, v{srcm[1]}, v{srcm[2]}")
        e(f"v_max3_f32 v{a}, v{srcp[3]}, v{srcp[4]}, v{srcp[5]}\nv_min3_f32 v{b}, v{srcm[3]}, v{srcm[4]}, v{srcm[5]}")
        e(f"v_max3_f32 v{m}, v{m}, v{srcp[6]}, v{srcp[7]}\nv_min3_f32 v{n}, v{n}, v{srcm[6]}, v{srcm[7]}")
        e(f"v_max3_f32 v{a}, v{a}, v{srcp[8]}, v{srcp[9]}\nv_min3_f32 v{b}, v{b}, v{srcm[8]}, v{srcm[9]}")
        e(f"v_max3_f32 v{m}, v{m}, v{srcp[10]}, v{srcp[11]}\nv_min3_f32 v{n}, v{n}, v{srcm[10]}, v{srcm[11]}")
        e(f"v_max3_f32 v{a}, v{a}, v{srcp[12]}, v{srcp[13]}\nv_min3_f32 v{b}, v{b}, v{srcm[12]}, v{srcm[13]}")
        e(f"v_max3_f32 v{m}, v{m}, v{srcp[14]}, v{srcp[15]}\nv_min3_f32 v{n}, v{n}, v{srcm[14]}, v{srcm[15]}")
        e(f"v_max_f32 v{m}, v{m}, v{a}\nv_min_f32 v{n}, v{n}, v{b}")
        e(f"v_mov_b32 v{a}, v{m}\nv_mov_b32 v{b}, v{n}")
        e(f"v_permlane32_swap_b32 v{m}, v{a}\nv_permlane32_swap_b32 v{n}, v{b}")
        e(f"v_max_f32 v{m}, v{m}, v{a}\nv_min_f32 v{n}, v{n}, v{b}")
        e(f"v_mul_f32 v{m}, s{S_L}, v{m}\nv_mul_f32 v{n}, s{S_L}, v{n}")
        for r in range(16):
            e(f"v_fma_f32 v{EP+r}, v{srcp[r]}, s{S_L}, -v{m}")
            e(f"v_fma_f32 v{EM+r}, v{srcm[r]}, s{S_NL}, v{n}")
        for r in range(16):
            e(f"v_exp_f32 v{EP+r}, v{EP+r}\nv_exp_f32 v{EM+r}, v{EM+r}")
        e(f"v_add_f32 v{m}, v{EP}, v{EP+1}\nv_add_f32 v{n}, v{EM}, v{EM+1}\nv_add_f32 v{a}, v{EP+2}, v{EP+3}\nv_add_f32 v{b}, v{EM+2}, v{EM+3}")
        for r in range(4, 16, 2):
            e(f"v_add_f32 v{m}, v{m}, v{EP+r}\nv_add_f32 v{n}, v{n}, v{EM+r}\nv_add_f32 v{a}, v{a}, v{EP+r+1}\nv_add_f32 v{b}, v{b}, v{EM+r+1}")
        e(f"v_add_f32 v{m}, v{m}, v{a}\nv_add_f32 v{n}, v{n}, v{b}")
        e(f"v_mov_b32 v{a}, v{m}\nv_mov_b32 v{b}, v{n}")
        e(f"v_permlane32_swap_b32 v{m}, v{a}\nv_permlane32_swap_b32 v{n}, v{b}")
        e(f"v_add_f32 v{m}, v{m}, v{a}\nv_add_f32 v{n}, v{n}, v{b}")
        e(f"v_rcp_f32 v{m}, v{m}\nv_rcp_f32 v{n}, v{n}")
        for r in range(16):
            e(f"v_mul_f32 v{EP+r}, v{EP+r}, v{m}\nv_mul_f32 v{EM+r}, v{EM+r}, v{n}")
        for r in range(8):
            e(f"v_cvt_pk_bf16_f32 v{OP+r}, v{EP+2*r}, v{EP+2*r+1}\nv_cvt_pk_bf16_f32 v{OM+r}, v{EM+2*r}, v{EM+2*r+1}")

    def att(self):
        e = self.e
        VXO0=10; VXO1=11; VWO=12; VXR=14; VWR=18; VWC=19; VXC=20; VG=24; Z0=25; Z1=26; VGATE=27
        WF=28; GF=36; X=44; ACC=156; P=172; EP=188; EM=204; PHI=220; IDF=228; NINF=8; PINF=9; TT=236; VP=246
        MISC=19*8192; GATE=MISC; WPHI=MISC+1024
        FIN=131072
        e.label("L_att")
        e(f"s_mov_b32 s12, s66\ns_mov_b32 s13, s67\ns_mov_b32 s14, {448*1344*2}")
        self.diag_clear()
        self.x_dma_setup(VXO0, VXO1, 1, 2)
        e(f"""
v_lshrrev_b32 v1, 3, v0
v_and_b32 v2, 7, v0
v_lshrrev_b32 v3, 1, v1
v_and_b32 v3, 1, v3
v_lshlrev_b32 v3, 2, v3
v_xor_b32 v2, v2, v3
v_mul_u32_u24 v1, 2688, v1
v_lshl_add_u32 v{VWO}, v2, 4, v1
s_mul_i32 s{S_T0}, s{S_SL}, 112
s_mul_i32 s{S_T1}, s{S_W}, {8*2688}
s_add_u32 s{S_WB}, s{S_T0}, s{S_T1}
s_lshl_b32 s{S_WL}, s{S_W}, 10
""")
        vm = VM(e)
        order = [("k", s) for s in range(7)] + [("v", s) for s in range(7)] + [("q", s) for s in range(7)]
        sect = dict(q=0, k=1, v=2)
        slot = {}
        for s in range(5): slot[("k", s)] = 14 + s
        rest = order[5:]
        for n in range(14): slot[rest[n]] = n
        slot[rest[14]] = 14; slot[rest[15]] = 15
        def w_dma(key):
            sec, st = key
            e(f"s_add_u32 s{S_T0}, s{S_WB}, {64*st*2688 + sect[sec]*896}\ns_add_u32 m0, s{S_WL}, {slot[key]*8192}")
            vm.issue(f"{sec}{st}", f"buffer_load_dwordx4 v{VWO}, {SRD_W1}, s{S_T0} offen lds")
        for st in range(7):
            self.x_dma(vm, st, 16384*st, VXO0, VXO1)
            if st < 5: w_dma(("k", st))
            if st == 0:
                e(f"v_lshlrev_b32 v1, 4, v0\ns_mov_b32 m0, {GATE}")
                vm.issue("x0", f"buffer_load_dwordx4 v1, {SRD_GATE}, 0 offen lds")
                e(f"s_and_b32 s{S_T0}, s{S_W}, 3\ns_lshl_b32 s{S_T0}, s{S_T0}, 10\ns_add_u32 m0, s{S_T0}, {WPHI}\ns_mul_i32 s{S_T1}, s{S_SL}, 3136\ns_add_u32 s{S_T0}, s{S_T0}, s{S_T1}")
                vm.issue("x0", f"buffer_load_dwordx4 v1, {SRD_PHI}, s{S_T0} offen lds")
        e(f"s_and_b32 s{S_T5}, s{S_W}, 3")
        self.x_read_setup(VXR, S_T5, 1, 2, 3)
        e(f"""
s_lshr_b32 s{S_T4}, s{S_W}, 2
s_mul_i32 s{S_T1}, s{S_T4}, 56
v_bfe_u32 v1, v0, 4, 1
v_lshlrev_b32 v1, 5, v1
v_and_b32 v2, 3, v0
v_lshl_add_u32 v1, v2, 3, v1
v_add_u32 v1, s{S_T1}, v1
v_bfe_u32 v2, v0, 2, 2
v_lshrrev_b32 v3, 1, v2
v_lshlrev_b32 v3, 6, v3
v_xor_b32 v1, v1, v3
v_lshrrev_b32 v3, 5, v0
v_lshl_add_u32 v3, v3, 3, v2
v_lshl_add_u32 v{VWR}, v3, 7, v1
v_lshrrev_b32 v1, 5, v0
v_lshlrev_b32 v1, 4, v1
v_add_u32 v{VG}, {GATE}, v1
v_mov_b32 v{Z0}, 0
v_mov_b32 v{Z1}, 0
v_mov_b32 v{NINF}, 0xff800000
v_mov_b32 v{PINF}, 0x7f800000
""")
        e(f"v_and_b32 v1, 31, v0\nv_lshrrev_b32 v2, 5, v0\nv_lshlrev_b32 v2, 2, v2\nv_sub_u32 v1, v1, v2\nv_mov_b32 v3, 0x3f80\nv_mov_b32 v4, 0x3f800000")
        for s in range(2):
            for j, b in enumerate((0, 2, 8, 10)):
                d = IDF + 4*s + j
                e(f"v_cmp_eq_u32 vcc, {16*s+b}, v1\nv_cndmask_b32 v{d}, 0, v3, vcc\nv_cmp_eq_u32 vcc, {16*s+b+1}, v1\nv_cndmask_b32 v{d}, v{d}, v4, vcc")
        valid_p2 = e.newlabel("L_nop2setup")
        self.p2_setup()

        def gemm_pass(sec, swap, first):
            for r in range(16): e(f"v_mov_b32 v{ACC+r}, 0")
            def reads(st, ks):
                b = ks & 1; n = 0
                if first:
                    xr = X + 4*(4*st+ks)
                    e(f"ds_read_b128 v[{xr}:{xr+3}], v{VXC+ks}")
                    e(f"ds_read_b128 v[{GF+4*b}:{GF+4*b+3}], v{VG} offset:{(4*st+ks)*32}"); n += 2
                e(f"ds_read_b64_tr_b16 v[{WF+4*b}:{WF+4*b+1}], v{VWC} offset:{ks*2048}")
                e(f"ds_read_b64_tr_b16 v[{WF+4*b+2}:{WF+4*b+3}], v{VWC} offset:{ks*2048+512}")
                return n + 2
            def setslot(st):
                e(f"v_add_u32 v{VWC}, {slot[(sec,st)]*8192}, v{VWR}")
                if first:
                    for ks in range(4): e(f"v_add_u32 v{VXC+ks}, {16384*st}, v{VXR+ks}")
            def mf(st, ks):
                b = ks & 1; xr = X + 4*(4*st+ks)
                A_, B_ = (f"v[{WF+4*b}:{WF+4*b+3}]", f"v[{xr}:{xr+3}]")
                if swap: A_, B_ = B_, A_
                e(f"v_mfma_f32_32x32x16_bf16 v[{ACC}:{ACC+15}], {A_}, {B_}, v[{ACC}:{ACC+15}]")
                if first:
                    for d in range(4): e(f"v_dot2c_f32_bf16 v{Z0+(d&1)}, v{xr+d}, v{GF+4*b+d}")
            def need(st): return [f"{sec}{st}"] + ([f"x{st}"] if first else [])
            vm.wait(need(0)); e("s_barrier")
            setslot(0); reads(0, 0)
            for st in range(7):
                for ks in range(4):
                    if ks < 3:
                        n = reads(st, ks+1); e(f"s_waitcnt lgkmcnt({n})"); mf(st, ks)
                    elif st < 6:
                        vm.wait(need(st+1), "lgkmcnt(0)"); e("s_barrier")
                        setslot(st+1); reads(st+1, 0); mf(st, 3)
                        if first:
                            for key in rest[2*st:2*st+2]: w_dma(key)
                            if st == 0: w_dma(rest[14])
                            if st == 1: w_dma(rest[15])
                    else:
                        e("s_waitcnt lgkmcnt(0)"); mf(st, 3)

        def phi_proj():
            for r in range(8): e(f"v_cvt_pk_bf16_f32 v{EM+r}, v{ACC+2*r}, v{ACC+2*r+1}")
            e(f"v_mfma_f32_32x32x16_bf16 v[{P}:{P+15}], v[{PHI}:{PHI+3}], v[{EM}:{EM+3}], 0")
            e(f"v_mfma_f32_32x32x16_bf16 v[{P}:{P+15}], v[{PHI+4}:{PHI+7}], v[{EM+4}:{EM+7}], v[{P}:{P+15}]")

        gemm_pass("k", False, True)
        self.stamp(1)
        e("s_barrier")
        for key in rest[12:14]: w_dma(key)
        e(f"""
s_lshr_b32 s{S_T4}, s{S_W}, 2
s_mul_i32 s{S_T1}, s{S_T4}, 1568
s_add_u32 s{S_T1}, s{S_T1}, {WPHI}
v_lshrrev_b32 v1, 5, v0
v_bfe_u32 v2, v0, 2, 2
v_lshl_add_u32 v1, v1, 2, v2
v_mul_u32_u24 v1, 56, v1
v_bfe_u32 v2, v0, 4, 1
v_lshl_add_u32 v1, v2, 5, v1
v_and_b32 v2, 3, v0
v_lshl_add_u32 v1, v2, 3, v1
v_add_u32 v1, s{S_T1}, v1
ds_read_b64_tr_b16 v[{PHI}:{PHI+1}], v1
ds_read_b64_tr_b16 v[{PHI+2}:{PHI+3}], v1 offset:{8*56}
ds_read_b64_tr_b16 v[{PHI+4}:{PHI+5}], v1 offset:{16*56}
ds_read_b64_tr_b16 v[{PHI+6}:{PHI+7}], v1 offset:{24*56}
v_add_f32 v{Z0}, v{Z0}, v{Z1}
v_mov_b32 v{Z1}, v{Z0}
v_permlane32_swap_b32 v{Z0}, v{Z1}
v_add_f32 v{Z0}, v{Z0}, v{Z1}
v_mul_f32 v{Z0}, s{S_NL}, v{Z0}
v_exp_f32 v{Z0}, v{Z0}
v_add_f32 v{Z0}, 1.0, v{Z0}
v_rcp_f32 v{VGATE}, v{Z0}
s_waitcnt lgkmcnt(0)
""")
        for r in range(8): e(f"v_cndmask_b32 v{PHI+r}, v{PHI+r}, 0, {S_GE28}")
        for r in (6, 7): e(f"v_cndmask_b32 v{PHI+r}, v{PHI+r}, 0, {S_HH}")
        phi_proj()
        self.softmax(P, EP, EM, P, P+8, NINF, PINF, TT)
        for sg, dst in ((0, EP), (1, EM)):
            src = P + 8*sg
            e(f"v_mfma_f32_32x32x16_bf16 v[{dst}:{dst+15}], v[{src}:{src+3}], v[{IDF}:{IDF+3}], 0")
            e(f"v_mfma_f32_32x32x16_bf16 v[{dst}:{dst+15}], v[{src+4}:{src+7}], v[{IDF+4}:{IDF+7}], v[{dst}:{dst+15}]")
        for r in range(8): e(f"v_cvt_pk_bf16_f32 v{P+r}, v{EP+2*r}, v{EP+2*r+1}")
        for r in range(8): e(f"v_cvt_pk_bf16_f32 v{P+8+r}, v{EM+2*r}, v{EM+2*r+1}")
        self.stamp(2)
        gemm_pass("v", True, False)
        for r in range(8): e(f"v_cvt_pk_bf16_f32 v{VP+r}, v{ACC+2*r}, v{ACC+2*r+1}")
        e("v_mov_b32 v1, 0x3f803f80")
        for r in range(8): e(f"v_cndmask_b32 v{VP+r}, v{VP+r}, v1, {S_M28}")
        for sg, dst in ((0, EP), (1, EM)):
            src = P + 8*sg
            e(f"v_mfma_f32_32x32x16_bf16 v[{dst}:{dst+15}], v[{src}:{src+3}], v[{VP}:{VP+3}], 0")
            e(f"v_mfma_f32_32x32x16_bf16 v[{dst}:{dst+15}], v[{src+4}:{src+7}], v[{VP+4}:{VP+7}], v[{dst}:{dst+15}]")
        e(f"""
s_barrier
s_lshl_b32 s{S_T0}, s{S_W}, 13
v_lshlrev_b32 v1, 4, v0
v_add_u32 v2, s{S_T0}, v1
""")
        for q in range(4):
            src = (EP if q < 2 else EM) + 8*(q & 1)
            e(f"ds_write_b128 v2, v[{src}:{src+3}] offset:{q*2048}\nds_write_b128 v2, v[{src+4}:{src+7}] offset:{q*2048+1024}")
        e(f"""
s_and_b32 s{S_T0}, s{S_W}, 4
s_lshl_b32 s{S_T0}, s{S_T0}, 13
s_and_b32 s{S_T1}, s{S_W}, 3
s_lshl_b32 s{S_T1}, s{S_T1}, 11
s_add_u32 s{S_T0}, s{S_T0}, s{S_T1}
v_add_u32 v2, s{S_T0}, v1
s_waitcnt lgkmcnt(0)
s_barrier
""")
        for tg in range(4):
            e(f"ds_read_b128 v[{EP+8*tg}:{EP+8*tg+3}], v2 offset:{tg*8192}\nds_read_b128 v[{EP+8*tg+4}:{EP+8*tg+7}], v2 offset:{tg*8192+1024}")
        e("s_waitcnt lgkmcnt(0)")
        for r in range(8):
            e(f"v_add_f32 v{EP+r}, v{EP+r}, v{EP+8+r}\nv_add_f32 v{EP+16+r}, v{EP+16+r}, v{EP+24+r}")
        for r in range(8): e(f"v_add_f32 v{EP+r}, v{EP+r}, v{EP+16+r}")
        e(f"""
s_lshl_b32 s{S_T0}, s{S_SL}, 18
s_lshl_b32 s{S_T1}, s{S_I}, 14
s_add_u32 s{S_T0}, s{S_T0}, s{S_T1}
s_lshl_b32 s{S_T1}, s{S_W}, 11
s_add_u32 s{S_T0}, s{S_T0}, s{S_T1}
s_add_u32 s{S_T0}, s{S_T0}, {WS_PART}
""")
        vm.issue("part", f"buffer_store_dwordx4 v[{EP}:{EP+3}], v1, {SRD_WS}, s{S_T0} offen sc1")
        vm.issue("part", f"buffer_store_dwordx4 v[{EP+4}:{EP+7}], v1, {SRD_WS}, s{S_T0} offen offset:1024 sc1")
        self.stamp(3)
        vm.drain()
        e("s_barrier")
        e(f"s_lshl_b32 s{S_T1}, s{S_SL}, 7\ns_lshl_b32 s{S_T2}, s{S_I}, 2\ns_add_u32 s{S_T1}, s{S_T1}, s{S_T2}\ns_add_u32 s{S_T1}, s{S_T1}, {WS_FP}")
        self.get_nonce_and_flag(vm, S_T1, True)
        self.stamp(4)
        for st in range(7): vm.q.append(f"q{st}")
        gemm_pass("q", False, False)
        phi_proj()
        self.softmax(P, EP, EM, P, P+8, NINF, PINF, TT)
        self.stamp(5)
        vm.drain()
        e("s_barrier")
        Lsk = e.newlabel("L_nopre")
        e(f"s_cmp_ge_u32 s{S_LI}, 28\ns_cbranch_scc1 {Lsk}")
        for st in range(self.o["R2"]): self.p2_w_dma(vm, st)
        e.label(Lsk)
        e(f"s_lshl_b32 s{S_T1}, s{S_SL}, 7\ns_add_u32 s{S_T1}, s{S_T1}, {WS_FP}")
        self.poll_flags(S_T1, 16)
        self.stamp(6)
        e(f"""
s_lshl_b32 s{S_T0}, s{S_SL}, 18
s_lshl_b32 s{S_T1}, s{S_W}, 11
s_add_u32 s{S_T0}, s{S_T0}, s{S_T1}
s_add_u32 s{S_T0}, s{S_T0}, {WS_PART}
v_lshlrev_b32 v1, 4, v0
""")
        for half in range(2):
            for k in range(8):
                ip = 8*half + k
                e(f"s_add_u32 s{S_T1}, s{S_T0}, {ip*16384}")
                e(f"buffer_load_dwordx4 v[{X+8*k}:{X+8*k+3}], v1, {SRD_WS}, s{S_T1} offen sc1")
                e(f"buffer_load_dwordx4 v[{X+8*k+4}:{X+8*k+7}], v1, {SRD_WS}, s{S_T1} offen offset:1024 sc1")
            for k in range(8):
                e(f"s_waitcnt vmcnt({14-2*k})")
                for r in range(8):
                    if half == 0 and k == 0: e(f"v_mov_b32 v{EP+r}, v{X+r}")
                    else: e(f"v_add_f32 v{EP+r}, v{EP+r}, v{X+8*k+r}")
        for r in range(4): e(f"v_cvt_pk_bf16_f32 v{EM+r}, v{EP+2*r}, v{EP+2*r+1}")
        e(f"""
s_lshl_b32 s{S_T0}, s{S_W}, 10
s_add_u32 s{S_T0}, s{S_T0}, {FIN}
v_add_u32 v2, s{S_T0}, v1
ds_write_b128 v2, v[{EM}:{EM+3}]
s_and_b32 s{S_T0}, s{S_W}, 4
s_lshl_b32 s{S_T0}, s{S_T0}, 10
s_add_u32 s{S_T0}, s{S_T0}, {FIN}
v_add_u32 v2, s{S_T0}, v1
s_waitcnt lgkmcnt(0)
s_barrier
""")
        for q in range(4): e(f"ds_read_b128 v[{EP+4*q}:{EP+4*q+3}], v2 offset:{q*1024}")
        e("s_waitcnt lgkmcnt(0)")
        for q in range(4):
            src = P + 8*(q >> 1) + 4*(q & 1)
            c_ = "0" if q == 0 else f"v[{ACC}:{ACC+15}]"
            e(f"v_mfma_f32_32x32x16_bf16 v[{ACC}:{ACC+15}], v[{EP+4*q}:{EP+4*q+3}], v[{src}:{src+3}], {c_}")
        e(f"""
v_mov_b32 v3, v{ACC+12}
v_mov_b32 v4, v{ACC+12}
v_permlane32_swap_b32 v3, v4
v_add_f32 v4, 0x358637bd, v4
v_rcp_f32 v4, v4
v_mul_f32 v4, v4, v{VGATE}
""")
        for r in range(16): e(f"v_mul_f32 v{ACC+r}, v{ACC+r}, v4")
        for r in range(12, 16): e(f"v_cndmask_b32 v{ACC+r}, v{ACC+r}, 0, {S_HH}")
        for r in range(8): e(f"v_cvt_pk_bf16_f32 v{EM+r}, v{ACC+2*r}, v{ACC+2*r+1}")
        e(f"""
s_lshl_b32 s{S_T0}, s{S_I}, 2
s_and_b32 s{S_T1}, s{S_W}, 3
s_add_u32 s{S_T0}, s{S_T0}, s{S_T1}
s_mul_i32 s{S_T0}, s{S_T0}, {ACT_STEPS}
s_lshl_b32 s{S_T1}, s{S_SL}, 2
s_add_u32 s{S_T0}, s{S_T0}, s{S_T1}
s_lshr_b32 s{S_T1}, s{S_W}, 2
s_lshl_b32 s{S_T1}, s{S_T1}, 1
s_add_u32 s{S_T0}, s{S_T0}, s{S_T1}
s_add_u32 s{S_T0}, s{S_T0}, 112
s_lshl_b32 s{S_T0}, s{S_T0}, 10
buffer_store_dwordx4 v[{EM}:{EM+3}], v1, {SRD_WS}, s{S_T0} offen sc1
buffer_store_dwordx4 v[{EM+4}:{EM+7}], v1, {SRD_WS}, s{S_T0} offen offset:1024 sc1
s_waitcnt vmcnt(0)
s_barrier
""")
        e(f"s_lshl_b32 s{S_T1}, s{S_I}, 7\ns_lshl_b32 s{S_T2}, s{S_SL}, 2\ns_add_u32 s{S_T1}, s{S_T1}, s{S_T2}\ns_add_u32 s{S_T1}, s{S_T1}, {WS_FO}")
        self.get_nonce_and_flag(vm, S_T1, False)
        self.stamp(7)
        e(f"s_cmp_ge_u32 s{S_LI}, 28\ns_cbranch_scc1 L_fin")

    def build(self):
        e = self.e
        hdr = open("gated_mix__linear_kernel_hedgehog__dense_activation_silu__prompt.s.ref").read().split("\n")
        head = [l for l in hdr if l.startswith(";") and "@launch" not in l and "Override" not in l and "grid=ceil" not in l]
        lines = "\n".join(head)
        pre = lines + f"\n; @launch grid=(256,1,1) block=(512,1,1) lds=163840\n" + f""".amdgcn_target "amdgcn-amd-amdhsa--gfx950"
.text
.globl {KNAME}
.p2align 8
.type {KNAME},@function
{KNAME}:
L_code_begin:
"""
        self.prologue()
        self.ffn()
        self.att()
        self.phase2()
        e.label("L_fin")
        self.write_stamps()
        e.label("L_end")
        e("s_endpgm")
        body = e.text()
        post = f"""L_code_end:
.set CODE_BYTES, L_code_end - L_code_begin
.section .rodata,"a"
.p2align 6
.amdhsa_kernel {KNAME}
  .amdhsa_next_free_vgpr 256
  .amdhsa_next_free_sgpr 96
  .amdhsa_accum_offset 256
  .amdhsa_group_segment_fixed_size 0
  .amdhsa_kernarg_size 88
  .amdhsa_user_sgpr_count 2
  .amdhsa_user_sgpr_kernarg_segment_ptr 1
  .amdhsa_system_sgpr_workgroup_id_x 1
.end_amdhsa_kernel
"""
        return pre + body + post

if __name__ == "__main__":
    import argparse
    ap = argparse.ArgumentParser()
    ap.add_argument("-o", default="k.s"); ap.add_argument("--diag", action="store_true")
    a = ap.parse_args()
    import subprocess, re
    def asm_size(t):
        open("_k.s","w").write(t)
        r = subprocess.run(["clang","-x","assembler","-target","amdgcn-amd-amdhsa","-mcpu=gfx950","-c","_k.s","-o","_k.o"],capture_output=True,text=True)
        assert r.returncode == 0, r.stderr[:3000]
        o = subprocess.run(["llvm-objdump","-h","_k.o"],capture_output=True,text=True).stdout
        return int(re.search(r"\.text\s+([0-9a-f]+)", o).group(1), 16)
    g = Gen(diag=a.diag)
    t = g.build()
    t = t.replace(".set CODE_BYTES, L_code_end - L_code_begin\n", "")
    sz = asm_size(t.replace("CODE_BYTES", "0x10000"))
    t = t.replace("CODE_BYTES", hex(sz))
    assert asm_size(t) == sz
    print("code bytes", sz)
    open(a.o, "w").write(t)
    print("written", a.o, len(t), "bytes; nops inserted:", g.e.nops)
```
